```python
import torch

def _softmax(x, axis=-1):
    return torch.softmax(x, dim=axis)
def _gelu(x):
    return torch.nn.functional.gelu(x, approximate="tanh")
def _silu(x):
    return torch.nn.functional.silu(x)
def _sigmoid(x):
    return torch.sigmoid(x)
def _layernorm(x, axis=-1, eps=1e-5):
    m = x.mean(dim=axis, keepdim=True)
    v = x.var(dim=axis, keepdim=True, unbiased=False)
    return (x - m) / torch.sqrt(v + eps)
def _scatter_add(tgt, idx, src, axis=0):
    return tgt.clone().index_add_(axis, idx, src)
def _segment_sum(src, seg, n):
    out = torch.zeros((n,) + src.shape[1:], dtype=src.dtype)
    return out.index_add_(0, seg, src)
def _pad(x, pw):
    flat = tuple(v for pair in reversed(pw) for v in pair)
    return torch.nn.functional.pad(x, flat)

kernel_name = 'recurrent_scan__mha_block_cached__dense_activation_squared_relu__prompt'

def setup_inputs():

    _w = (lambda a: (lambda t: t.to(torch.bfloat16) if t.is_floating_point() else t)(torch.as_tensor(a)))
    def _A_setup():
        B, Sq, D = 1, 2048, 640
        H, Sk, Dh = 32, 2048, 192
        return {
            "x": _w((lambda *s: torch.randn(*s, dtype=torch.bfloat16) * 0.05)(B, Sq, D)),
            "k_cache": _w((lambda *s: torch.randn(*s, dtype=torch.bfloat16) * 0.8)(B, H, Sk, Dh)),
            "v_cache": _w((lambda *s: torch.randn(*s, dtype=torch.bfloat16) * 0.2)(B, H, Sk, Dh)),
            "wq": _w((lambda *s: torch.randn(*s, dtype=torch.bfloat16) * 0.8)(D, H * Dh) * (D ** -0.5)),
            "wo": _w((lambda *s: torch.randn(*s, dtype=torch.bfloat16) * 0.2)(H * Dh, D) * ((H * Dh) ** -0.5)),
        }
    _A_in = _A_setup()

    def _B_setup():
        B, S, D, F = 1, 2048, 640, 1536
        return {
            "x": _w((lambda *s: torch.randn(*s, dtype=torch.bfloat16) * 0.05)(B, S, D)),
            "w1": _w((lambda *s: torch.randn(*s, dtype=torch.bfloat16) * 0.1)(D, F)),
            "b1": _w((lambda *s: torch.randn(*s, dtype=torch.bfloat16) * 0.8)(F)),
            "w2": _w((lambda *s: torch.randn(*s, dtype=torch.bfloat16) * 0.1)(F, D)),
            "b2": _w((lambda *s: torch.randn(*s, dtype=torch.bfloat16) * 12.8)(D)),
        }
    _B_in = _B_setup()

    return {
        "A_x": _A_in["x"],
        "A_k_cache": _A_in["k_cache"],
        "A_v_cache": _A_in["v_cache"],
        "A_wq": _A_in["wq"],
        "A_wo": _A_in["wo"],
        "B_x": _B_in["x"],
        "B_w1": _B_in["w1"],
        "B_b1": _B_in["b1"],
        "B_w2": _B_in["w2"],
        "B_b2": _B_in["b2"],
    }

def reference(A_x, A_k_cache, A_v_cache, A_wq, A_wo, B_x, B_w1, B_b1, B_w2, B_b2):
    def _A_ref(x, k_cache, v_cache, wq, wo):
        B, Sq, D = x.shape
        H, Dh = 32, 192
        q = (lambda x, *d: x.permute(*d))((x @ wq).reshape(B, Sq, H, Dh), 0, 2, 1, 3)
        scores = torch.einsum("bhqd,bhkd->bhqk", q, k_cache) * (Dh ** -0.5)
        p = _softmax(scores, axis=-1)
        o = torch.einsum("bhqk,bhkd->bhqd", p, v_cache)
        return (lambda x, *d: x.permute(*d))(o, 0, 2, 1, 3).reshape(B, Sq, H * Dh) @ wo

    def _B_ref(x, w1, b1, w2, b2):
        h = torch.einsum("bsd,df->bsf", x, w1) + b1
        zero = torch.zeros_like(h)
        r = torch.where(h > zero, h, zero)
        h = r * r
        out = torch.einsum("bsf,fd->bsd", h, w2) + b2
        return out

    x = A_x
    xn = _layernorm(x, axis=-1)
    s = _A_ref(xn, A_k_cache, A_v_cache, A_wq, A_wo)
    g = _silu(_B_ref(xn, B_w1, B_b1, B_w2, B_b2))
    return x + s * g
```

```python
import re

class Ins:
    __slots__ = ("text", "kind", "prod", "need", "cost", "tag")
    def __init__(self, text, kind, prod=None, need=(), cost=1, tag=None):
        self.text = text; self.kind = kind; self.prod = prod
        self.need = tuple(need) if not isinstance(need, str) else (need,)
        self.cost = cost; self.tag = tag
    def __repr__(self): return self.text

def mfma(text, need=()): return Ins(text, "mfma", need=need, cost=2)
def valu(text, need=(), cost=1): return Ins(text, "valu", need=need, cost=cost)
def trans(text, need=()): return Ins(text, "trans", need=need, cost=2)
def salu(text, need=()): return Ins(text, "salu", need=need)
def ds(text, prod=None, need=()): return Ins(text, "ds", prod=prod, need=need)
def vm(text, prod=None, need=()): return Ins(text, "vm", prod=prod, need=need)
def label(name): return Ins(name + ":", "label", cost=0)
def raw(text): return Ins(text, "raw", cost=0)
def wait_tok(tokens):
    return Ins("", "waitpt", need=tokens, cost=0)

def insert_waits(stream, state=None):
    if state is None: state = ([], [])
    lg, vmq = list(state[0]), list(state[1])
    out = []; log = []
    for idx, ins in enumerate(stream):
        vN = None; lN = None
        for tok in ins.need:
            if tok in lg:
                p = len(lg) - 1 - lg[::-1].index(tok)
                n = len(lg) - p - 1
                lN = n if lN is None else min(lN, n)
            if tok in vmq:
                p = len(vmq) - 1 - vmq[::-1].index(tok)
                n = len(vmq) - p - 1
                vN = n if vN is None else min(vN, n)
        if vN is not None or lN is not None:
            parts = []
            if vN is not None:
                assert vN <= 63
                parts.append(f"vmcnt({vN})"); vmq = vmq[len(vmq) - vN:] if vN else []
            if lN is not None:
                assert lN <= 15, lN
                parts.append(f"lgkmcnt({lN})"); lg = lg[len(lg) - lN:] if lN else []
            out.append(Ins("s_waitcnt " + " ".join(parts), "wait"))
            log.append((idx, vN, lN))
        if ins.kind == "ds": lg.append(ins.prod)
        elif ins.kind == "vm": vmq.append(ins.prod)
        if ins.kind != "waitpt": out.append(ins)
        assert len(lg) <= 15 or True
    return out, (lg, vmq), log

_reg = re.compile(r"\b([vas])(\d+)\b|\b([vas])\[(\d+):(\d+)\]")
def regs_of(op):
    r = []
    for m in _reg.finditer(op):
        if m.group(1): r.append((m.group(1), int(m.group(2))))
        else:
            for i in range(int(m.group(4)), int(m.group(5)) + 1): r.append((m.group(3), i))
    return r

def rw_sets(text):
    t = text.split(";")[0].strip()
    if not t or t.endswith(":"): return set(), set()
    sp = t.split(None, 1)
    op = sp[0]; args = sp[1] if len(sp) > 1 else ""
    ops = [a.strip() for a in args.split(",")]
    W = set(); R = set()
    if op.startswith("v_cmp"):
        if ops[0] == "vcc": W.add(("vcc", 0))
        else: W.update(regs_of(ops[0]))
        for o in ops[1:]: R.update(regs_of(o))
    elif op.startswith("v_permlane32_swap") or op.startswith("v_permlane16_swap"):
        for o in ops[:2]: W.update(regs_of(o)); R.update(regs_of(o))
    elif op.startswith("v_readfirstlane") or op.startswith("v_readlane"):
        W.update(regs_of(ops[0])); R.update(regs_of(ops[1]))
    elif op.startswith("v_"):
        W.update(regs_of(ops[0]))
        rest = ops[1:]
        if op.startswith(("v_add_co", "v_addc_co", "v_sub_co")): rest = ops[2:]
        for o in rest: R.update(regs_of(o))
        if op.startswith("v_fmac") or op.startswith("v_dot2c"): R.update(regs_of(ops[0]))
    elif op.startswith("ds_read"):
        W.update(regs_of(ops[0])); R.update(regs_of(ops[1].split()[0]))
    elif op.startswith("ds_write"):
        for o in ops: R.update(regs_of(o.split()[0]))
    elif op.startswith("ds_swizzle") or op.startswith("ds_bpermute"):
        W.update(regs_of(ops[0]))
        for o in ops[1:]: R.update(regs_of(o.split()[0]))
    elif op.startswith("buffer_load"):
        if " lds" in t:
            for o in ops: R.update(regs_of(o.split()[0]))
        else:
            W.update(regs_of(ops[0]))
            for o in ops[1:]: R.update(regs_of(o.split()[0]))
    elif op.startswith("buffer_store"):
        for o in ops: R.update(regs_of(o.split()[0]))
    return W, R

def check_hazards(stream, name=""):
    real = [i for i in stream if i.kind not in ("label", "raw", "waitpt") and i.text]
    info = []
    for ins in real:
        t = ins.text
        op = t.split()[0]
        W, R = rw_sets(t)
        ws = 1
        if op == "s_nop": ws = int(t.split()[1]) + 1
        info.append((op, W, R, ws, t))
    errs = []
    n = len(info)
    for i, (op, W, R, ws, t) in enumerate(info):
        is_mfma = op.startswith("v_mfma")
        is_valu = op.startswith("v_") and not is_mfma
        is_trans = op in ("v_exp_f32", "v_rcp_f32", "v_rsq_f32", "v_log_f32", "v_sqrt_f32")
        if not (is_mfma or is_valu): continue
        dist = 0
        for k in range(i + 1, min(n, i + 40)):
            op2, W2, R2, ws2, t2 = info[k]
            m2 = op2.startswith("v_mfma"); v2 = op2.startswith("v_") and not m2
            mem2 = op2.startswith(("ds_", "buffer_"))
            def err(msg): errs.append(f"{name}: [{t}] -> [{t2}] dist {dist}: {msg}")
            if is_valu:
                if m2 and (W & R2) and dist < 2: err("VALU write -> MFMA read needs 2")
                if op2.startswith("v_permlane") and (W & R2) and dist < 2: err("VALU->permlane needs 2")
                if op2.startswith(("v_readfirstlane", "v_readlane")) and (W & R2) and dist < 1: err("VALU->readlane needs 1")
                if is_trans and v2 and (W & R2) and dist < 1 : err("trans->VALU needs 1")
                sg = {r for r in W if r[0] in ("s", "vcc")}
                if sg and v2 and (sg & R2) and dist < 2: err("VALU sgpr write -> VALU read needs 2")
                if sg and "vcc" in t2 and ("vcc", 0) in sg and op2.startswith("v_cndmask") and dist < 2: err("vcc->cndmask needs 2")
                if sg and op2.startswith("buffer_") and (sg & R2) and dist < 5: err("VALU sgpr write -> VMEM needs 5")
            if is_mfma:
                need = 12 if "32x32" in op else 8
                needab = 12 if "32x32" in op else 8
                D = W
                ops2 = [a.strip() for a in t2.split(None, 1)[1].split(",")] if len(t2.split(None,1)) > 1 else []
                if m2:
                    A = set(regs_of(ops2[1])) | set(regs_of(ops2[2]))
                    C = set(regs_of(ops2[3]))
                    if (D & A) and dist < needab: err(f"MFMA D -> MFMA A/B needs {needab}")
                    if (D & C) and D != C and dist < (10 if "32x32" in op else 6): err("MFMA D -> overlapping C")
                elif (v2 or mem2) and ((D & R2) or (D & W2)) and dist < need: err(f"MFMA D -> VALU/mem needs {need}")
                ops1 = [a.strip() for a in t.split(None, 1)[1].split(",")]
                C1 = set(regs_of(ops1[3]))
                if v2 and (C1 & W2) and not (D & W2) and dist < (7 if "32x32" in op else 3): err("MFMA reads C -> VALU write WAR")
            dist += ws2
            if dist > 14: break
    return errs

def render(stream):
    out = []
    for ins in stream:
        if ins.kind == "waitpt" or not ins.text: continue
        if ins.kind in ("label", "raw"): out.append(ins.text)
        else: out.append("    " + ins.text)
    return "\n".join(out)

def weave(mfmas, gaps):
    out = list(gaps.get(-1, []))
    for g, m in enumerate(mfmas):
        out.append(m)
        out.extend(gaps.get(g, []))
    return out
```

```python
from core import *
import math

XN_OFF = 0
XN_BYTES = 2048 * 640 * 2
O_OFF = 4 << 20
O_BYTES = 2048 * 6144 * 2
H_OFF = 32 << 20
H_BYTES = 2048 * 1536 * 2
P_OFF = 48 << 20
P_BYTES = 2048 * 640 * 4
CSCALE = math.log2(math.e) / math.sqrt(192.0)
import struct
def f2u(f): return struct.unpack("<I", struct.pack("<f", f))[0]

def kd(name, vgpr, sgpr, accum):
    return f""".section .rodata,"a"
.p2align 6
.amdhsa_kernel {name}
  .amdhsa_next_free_vgpr {vgpr}
  .amdhsa_next_free_sgpr {sgpr}
  .amdhsa_accum_offset {accum}
  .amdhsa_group_segment_fixed_size 0
  .amdhsa_kernarg_size 104
  .amdhsa_user_sgpr_count 2
  .amdhsa_user_sgpr_kernarg_segment_ptr 1
  .amdhsa_system_sgpr_workgroup_id_x 1
.end_amdhsa_kernel
.text
"""
def head(name):
    return f""".globl {name}
.p2align 8
.type {name},@function
{name}:
"""

def srd(s, base, size, off=0):
    L = []
    if off:
        L.append(f"s_add_u32 s{s}, s{base}, {off}")
        L.append(f"s_addc_u32 s{s+1}, s{base+1}, 0")
    else:
        L.append(f"s_mov_b32 s{s}, s{base}")
        L.append(f"s_mov_b32 s{s+1}, s{base+1}")
    L.append(f"s_mov_b32 s{s+2}, {size}")
    L.append(f"s_mov_b32 s{s+3}, 0x00020000")
    return L

def gen_k0(name="ln_kernel"):
    L = []
    A = L.append
    A("s_cmp_ge_u32 s2, 128")
    A("s_cbranch_scc1 K0_DONE")
    A("s_load_dwordx2 s[4:5], s[0:1], 0")
    A("s_load_dwordx2 s[6:7], s[0:1], 96")
    A("v_and_b32 v1, 15, v0")
    A("v_lshrrev_b32 v2, 4, v0")
    A("s_lshl_b32 s3, s2, 4")
    A("v_add_u32 v2, s3, v2")
    A("s_movk_i32 s16, 1280")
    A("v_mul_lo_u32 v2, v2, s16")
    A("v_lshl_add_u32 v2, v1, 4, v2")
    A("s_waitcnt lgkmcnt(0)")
    L += srd(8, 4, XN_BYTES)
    L += srd(12, 6, XN_BYTES, XN_OFF)
    for k in range(5):
        A(f"buffer_load_dwordx4 v[{4+4*k}:{7+4*k}], v2, s[8:11], 0 offen offset:{256*k}")
    A("s_waitcnt vmcnt(0)")
    for k in range(20):
        A(f"v_lshlrev_b32 v{32+2*k}, 16, v{4+k}")
        A(f"v_and_b32 v{33+2*k}, 0xffff0000, v{4+k}")
    A("v_add_f32 v3, v32, v33")
    for k in range(2, 40): A(f"v_add_f32 v3, v3, v{32+k}")
    def reduce16():
        for m in (1, 2, 4, 8):
            A(f"ds_swizzle_b32 v1, v3 offset:{(m<<10)|0x1f}")
            A("s_waitcnt lgkmcnt(0)")
            A("v_add_f32 v3, v3, v1")
    reduce16()
    A(f"v_mul_f32 v3, {hex(f2u(1.0/640))}, v3")
    for k in range(40): A(f"v_sub_f32 v{32+k}, v{32+k}, v3")
    A("v_mul_f32 v3, v32, v32")
    for k in range(1, 40): A(f"v_fmac_f32 v3, v{32+k}, v{32+k}")
    reduce16()
    A(f"v_mov_b32 v1, {hex(f2u(1e-5))}")
    A(f"v_fmac_f32 v1, {hex(f2u(1.0/640))}, v3")
    A("v_rsq_f32 v1, v1")
    A("s_nop 1")
    for k in range(40): A(f"v_mul_f32 v{32+k}, v{32+k}, v1")
    for k in range(20): A(f"v_cvt_pk_bf16_f32 v{4+k}, v{32+2*k}, v{33+2*k}")
    for k in range(5):
        A(f"buffer_store_dwordx4 v[{4+4*k}:{7+4*k}], v2, s[12:15], 0 offen offset:{256*k}")
    A("s_waitcnt vmcnt(0)")
    A("K0_DONE:")
    A("s_endpgm")
    return head(name) + "\n".join("    " + l if not l.endswith(":") else l for l in L) + "\n" + kd(name, 72, 24, 72)

P1_BASE = 0
KB = 65536
VB = KB + 49152
LDS_K1 = 163840

V_LANE = 1
V_XOFF = (2, 3)
V_WDMA = (4, 5, 6); V_W1DMA = 7
V_WRD = (8, 9); V_W1RD = (10, 11)
V_KRD = (12, 13, 14, 15)
V_VRD = (16, 17)
V_KDMA = (18, 19, 20); V_VDMA = (21, 22, 23)
V_MT = (24, 25); V_TMP = (26, 27); V_L = (28, 29); V_FAC = (30, 31)
def S(b, t): return 32 + (b * 2 + t) * 16
def MI(t): return 96 + t * 16
def QF(t, ks):
    idx = t * 12 + ks
    if idx < 16: return f"a[{192+4*idx}:{195+4*idx}]"
    r = 128 + 4 * (idx - 16); return f"v[{r}:{r+3}]"
def FR(i): r = 160 + 4 * (i % 4); return r
def XF(c, t, s): return 176 + (c % 3) * 16 + (t * 2 + s) * 4
V_T0 = 224
def OA(t, d): r = (t * 6 + d) * 16; return f"a[{r}:{r+15}]"
def HA(t, e): r = 192 + (t * 2 + e) * 16; return f"a[{r}:{r+15}]"

def gen_k1(name="attn_kernel", LA=6):
    pre = []
    A = pre.append
    A("s_cmp_ge_u32 s2, 256")
    A("s_cbranch_scc1 K1_DONE")
    A("s_load_dwordx4 s[52:55], s[0:1], 8")
    A("s_load_dwordx2 s[56:57], s[0:1], 24")
    A("s_load_dwordx4 s[60:63], s[0:1], 48")
    A("s_load_dwordx2 s[58:59], s[0:1], 96")
    A("s_and_b32 s3, s2, 7")
    A("s_lshr_b32 s4, s2, 3")
    A("s_lshl_b32 s3, s3, 2")
    A("s_lshr_b32 s5, s4, 3")
    A("s_add_u32 s3, s3, s5")
    A("s_and_b32 s4, s4, 7")
    A("v_lshrrev_b32 v2, 6, v0")
    A(f"v_and_b32 v{V_LANE}, 63, v0")
    A("s_nop 0")
    A("v_readfirstlane_b32 s5, v2")
    A("s_waitcnt lgkmcnt(0)")
    pre += srd(8, 58, XN_BYTES, XN_OFF)
    pre += srd(12, 56, 640 * 6144 * 2)
    pre += srd(16, 60, 640 * 1536 * 2)
    pre += srd(20, 52, 32 * 2048 * 192 * 2)
    pre += srd(24, 54, 32 * 2048 * 192 * 2)
    pre += srd(28, 58, O_BYTES, O_OFF)
    pre += srd(32, 58, H_BYTES, H_OFF)
    pre += srd(36, 62, 1536 * 2)
    ln = f"v{V_LANE}"
    A(f"v_and_b32 v32, 31, {ln}")
    A(f"v_lshrrev_b32 v33, 5, {ln}")
    A("s_lshl_b32 s6, s4, 8")
    A("s_lshl_b32 s7, s5, 6")
    A("s_add_u32 s6, s6, s7")
    A("v_add_u32 v34, s6, v32")
    A("s_movk_i32 s7, 1280")
    A("v_mul_lo_u32 v35, v34, s7")
    A(f"v_lshl_add_u32 v{V_XOFF[0]}, v33, 4, v35")
    A(f"v_add_u32 v{V_XOFF[1]}, {32*1280}, v{V_XOFF[0]}")
    A("s_mul_i32 s6, s5, 192")
    for i in range(3):
        A(f"v_add_u32 v36, s6, {ln}")
        if i: A(f"v_add_u32 v36, {64*i}, v36")
        A("v_mul_u32_u24 v37, 2731, v36")
        A("v_lshrrev_b32 v37, 16, v37")
        A("v_mul_u32_u24 v38, 24, v37")
        A("v_sub_u32 v38, v36, v38")
        A("v_bfe_u32 v39, v37, 1, 1")
        A("v_lshlrev_b32 v39, 2, v39")
        A("v_xor_b32 v39, v39, v38")
        A("v_lshlrev_b32 v39, 4, v39")
        A("v_mul_u32_u24 v40, 12288, v37")
        A("v_add_u32 v40, v40, v39")
        A(f"v_subrev_u32 v{V_WDMA[i]}, {1024*i}, v40")
        A("v_mul_u32_u24 v40, 384, v37")
        A("v_add_u32 v40, v40, v39")
        A(f"v_subrev_u32 v{V_VDMA[i]}, {1024*i}, v40")
        A("v_bfe_u32 v39, v37, 1, 3")
        A("v_xor_b32 v39, v39, v38")
        A("v_lshlrev_b32 v39, 4, v39")
        A("v_mul_u32_u24 v40, 384, v37")
        A("v_add_u32 v40, v40, v39")
        A(f"v_subrev_u32 v{V_KDMA[i]}, {1024*i}, v40")
    A("s_lshl_b32 s6, s5, 6")
    A(f"v_add_u32 v36, s6, {ln}")
    A("v_lshrrev_b32 v37, 3, v36")
    A("v_and_b32 v38, 7, v36")
    A("v_bfe_u32 v39, v37, 1, 1")
    A("v_lshlrev_b32 v39, 2, v39")
    A("v_xor_b32 v39, v39, v38")
    A("v_lshlrev_b32 v39, 4, v39")
    A("v_mul_u32_u24 v40, 3072, v37")
    A(f"v_add_u32 v{V_W1DMA}, v40, v39")
    A(f"v_bfe_u32 v36, {ln}, 4, 1")
    A(f"v_bfe_u32 v37, {ln}, 2, 2")
    A(f"v_and_b32 v38, 3, {ln}")
    A("v_lshrrev_b32 v39, 1, v37")
    A("v_lshlrev_b32 v40, 5, v36")
    A("v_lshl_add_u32 v40, v38, 3, v40")
    A("v_lshlrev_b32 v41, 6, v39")
    A("v_lshl_add_u32 v42, v33, 3, v37")
    A("v_mul_u32_u24 v43, 384, v42")
    A("v_add_u32 v43, v43, v40")
    A(f"v_add_u32 v{V_WRD[0]}, v43, v41")
    A(f"v_sub_u32 v{V_WRD[1]}, v43, v41")
    A("v_lshlrev_b32 v43, 7, v42")
    A("v_add_u32 v43, v43, v40")
    A(f"v_add_u32 v43, {P1_BASE + 12288}, v43")
    A(f"v_add_u32 v{V_W1RD[0]}, v43, v41")
    A("v_sub_u32 v43, v43, v41")
    A(f"v_add_u32 v{V_W1RD[1]}, 64, v43")
    A("v_lshl_add_u32 v42, v33, 2, v37")
    A("v_mul_u32_u24 v43, 384, v42")
    A("v_add_u32 v43, v43, v40")
    A(f"v_add_u32 v43, {VB}, v43")
    A(f"v_add_u32 v{V_VRD[0]}, v43, v41")
    A(f"v_sub_u32 v{V_VRD[1]}, v43, v41")
    A("v_bfe_u32 v36, v32, 1, 3")
    A("v_xor_b32 v36, v36, v33")
    A("v_mul_u32_u24 v37, 384, v32")
    A(f"v_add_u32 v37, {KB}, v37")
    for u in range(4):
        A(f"v_xor_b32 v38, {2*u}, v36")
        A(f"v_lshl_add_u32 v{V_KRD[u]}, v38, 4, v37")
    A("s_mul_i32 s40, s3, 384")
    A("s_mul_i32 s41, s3, 96")
    A("s_mul_i32 s42, s3, 786432")
    A("s_mov_b32 s43, s42")
    A("s_mul_i32 s44, s5, 3072")
    A("s_lshl_b32 s45, s5, 10")
    A("s_add_u32 s45, s45, 12288")
    A(f"s_add_u32 s46, s44, {KB}")
    A(f"s_add_u32 s47, s44, {VB}")
    A("s_mov_b32 s49, 0")
    for t in range(2):
        A(f"s_mov_b32 s{64+t}, 0xff800000")
        A(f"s_mov_b32 s{66+t}, 0xff800000")
    st = [salu(x) if x.startswith("s_") else valu(x) for x in pre]

    def dma_w(c):
        sl = P1_BASE + (c % 4) * 16384
        r = [salu(f"s_add_u32 m0, s44, {sl}"), salu("s_nop 0")]
        for i in range(3):
            r.append(vm(f"buffer_load_dwordx4 v{V_WDMA[i]}, s[12:15], s40 offen offset:{1024*i} lds", prod=f"W{c}"))
        r.append(salu(f"s_add_u32 m0, s45, {sl}"))
        r.append(salu(f"s_add_u32 s40, s40, {32*12288}"))
        r.append(vm(f"buffer_load_dwordx4 v{V_W1DMA}, s[16:19], s41 offen lds", prod=f"W{c}"))
        r.append(salu(f"s_add_u32 s41, s41, {32*3072}"))
        return r
    def xload(c):
        r = []
        for t in range(2):
            for s in range(2):
                x = XF(c, t, s)
                r.append(vm(f"buffer_load_dwordx4 v[{x}:{x+3}], v{V_XOFF[t]}, s[8:11], 0 offen offset:{64*c+32*s}", prod=f"X{c}"))
        return r
    def wfrag_reads(F):
        c, f = divmod(F, 16); s, n = divmod(f, 8)
        sl = (c % 4) * 16384
        fr = FR(F)
        r = []
        for u in range(2):
            if n < 6:
                off = P1_BASE + sl + (16 * s + 4 * u) * 384 + 64 * n
                r.append(ds(f"ds_read_b64_tr_b16 v[{fr+2*u}:{fr+2*u+1}], v{V_WRD[n%2]} offset:{off}", prod=f"WF{F}"))
            else:
                e = n - 6
                off = sl + (16 * s + 4 * u) * 128
                r.append(ds(f"ds_read_b64_tr_b16 v[{fr+2*u}:{fr+2*u+1}], v{V_W1RD[e]} offset:{off}", prod=f"WF{F}"))
        return r
    def kv_dma(kind, tile, slot=None):
        slot = tile % 4
        if kind == "K":
            r = [salu(f"s_add_u32 m0, s46, {slot*12288}"), salu("s_nop 0")]
            for i in range(3):
                r.append(vm(f"buffer_load_dwordx4 v{V_KDMA[i]}, s[20:23], s42 offen offset:{1024*i} lds", prod=f"K{tile}"))
            r.append(salu("s_add_u32 s42, s42, 12288"))
        else:
            r = [salu(f"s_add_u32 m0, s47, {slot*12288}"), salu("s_nop 0")]
            for i in range(3):
                r.append(vm(f"buffer_load_dwordx4 v{V_VDMA[i]}, s[24:27], s43 offen offset:{1024*i} lds", prod=f"V{tile}"))
            r.append(salu("s_add_u32 s43, s43, 12288"))
        return r

    NCH = 20
    st += dma_w(0) + xload(0) + dma_w(1) + xload(1) + dma_w(2)
    st.append(valu(f"v_lshlrev_b32 v{V_T0+30}, 3, v33"))
    st.append(salu("s_mul_i32 s6, s3, 96"))
    for e in range(2):
        for g in range(4 if e == 0 else 2):
            k = e * 4 + g
            st.append(vm(f"buffer_load_dwordx2 v[{V_T0+2*k}:{V_T0+2*k+1}], v{V_T0+30}, s[36:39], s6 offen offset:{64*e+16*g}", prod="B1"))
    st.append(wait_tok(["W0"]))
    st.append(salu("s_barrier"))
    nfr = NCH * 16
    for F in range(LA // 2): st += wfrag_reads(F)
    mf = []; gaps = {}
    def addgap(g, l): gaps.setdefault(g, []).extend(l)
    for F in range(nfr):
        c, f = divmod(F, 16); s, n = divmod(f, 8)
        fr = FR(F)
        for t in range(2):
            acc = OA(t, n) if n < 6 else HA(t, n - 6)
            x = XF(c, t, s)
            cin = "0" if (c == 0 and s == 0) else acc
            mf.append(mfma(f"v_mfma_f32_32x32x16_bf16 {acc}, v[{fr}:{fr+3}], v[{x}:{x+3}], {cin}", need=[f"WF{F}", f"X{c}"]))
        Fn = F + LA // 2
        if Fn < nfr: addgap(2 * F + (0 if LA % 2 == 0 else 1), wfrag_reads(Fn))
    for c in range(NCH):
        g0 = 32 * c
        pos = g0 - 1 if c == 0 else g0
        if c + 1 < NCH:
            addgap(pos, [wait_tok([f"W{c+1}"]), salu("s_barrier")])
        else:
            addgap(pos, [salu("s_barrier")])
        if c + 3 < NCH:
            d = dma_w(c + 3)
            addgap(g0 + 1, d[:5]); addgap(g0 + 5, d[5:])
        if c + 2 < NCH:
            xl = xload(c + 2)
            addgap(g0 + 8, xl[:2]); addgap(g0 + 10, xl[2:])
    kvl = [("K", 0), ("K", 1), ("V", 0), ("K", 2), ("V", 1), ("K", 3), ("V", 2)]
    for i, (kind, tile) in enumerate(kvl):
        addgap(32 * (8 + i) + 16, kv_dma(kind, tile))
    for g in gaps:
        bar = [x for x in gaps[g] if x.kind == "waitpt" or x.text == "s_barrier"]
        rest = [x for x in gaps[g] if not (x.kind == "waitpt" or x.text == "s_barrier")]
        gaps[g] = bar + rest
    st += weave(mf, gaps)

    st.append(salu("s_nop 15")); st.append(salu("s_nop 3"))
    st.append(valu("v_and_b32 v32, 31, v1")); st.append(valu("v_lshrrev_b32 v33, 5, v1"))
    st.append(salu("s_lshl_b32 s6, s4, 8")); st.append(salu("s_lshl_b32 s7, s5, 6")); st.append(salu("s_add_u32 s6, s6, s7"))
    st.append(valu("v_add_u32 v34, s6, v32"))
    st.append(salu("s_movk_i32 s7, 3072"))
    st.append(valu("v_mul_lo_u32 v35, v34, s7"))
    st.append(valu("v_lshl_add_u32 v35, v33, 4, v35"))
    st.append(valu(f"v_add_u32 v36, {32*3072}, v35"))
    st.append(salu("s_mul_i32 s6, s3, 96"))
    for k in range(6):
        for h2 in range(2):
            src = V_T0 + 2 * k + h2
            st.append(valu(f"v_lshlrev_b32 v{40+4*k+2*h2}, 16, v{src}", need=["B1"]))
            st.append(valu(f"v_and_b32 v{41+4*k+2*h2}, 0xffff0000, v{src}"))
    for t in range(2):
        for e in range(2):
            ng = 4 if e == 0 else 2
            base = 192 + (t * 2 + e) * 16
            for i in range(4 * ng):
                st.append(valu(f"v_accvgpr_read_b32 v{64+i}, a{base+i}"))
            for i in range(4 * ng):
                st.append(valu(f"v_add_f32 v{64+i}, v{64+i}, v{40+4*(e*4+i//4)+i%4}"))
            for i in range(4 * ng): st.append(valu(f"v_max_f32 v{64+i}, 0, v{64+i}"))
            for i in range(4 * ng): st.append(valu(f"v_mul_f32 v{64+i}, v{64+i}, v{64+i}"))
            ob = 80 + (t * 2 + e) * 8
            for i in range(2 * ng): st.append(valu(f"v_cvt_pk_bf16_f32 v{ob+i}, v{64+2*i}, v{65+2*i}"))
            st.append(salu("s_nop 1"))
            for hf in range(ng // 2):
                st.append(valu(f"v_permlane32_swap_b32 v{ob+4*hf}, v{ob+4*hf+2}"))
                st.append(valu(f"v_permlane32_swap_b32 v{ob+4*hf+1}, v{ob+4*hf+3}"))
            st.append(salu("s_nop 1"))
            for hf in range(ng // 2):
                st.append(vm(f"buffer_store_dwordx4 v[{ob+4*hf}:{ob+4*hf+3}], v{35+t}, s[32:35], s6 offen offset:{64*e+32*hf}"))
    st.append(salu(f"s_mov_b32 s7, {hex(f2u(CSCALE))}"))
    for t in range(2):
        for d in range(6):
            base = (t * 6 + d) * 16
            for i in range(16): st.append(valu(f"v_accvgpr_read_b32 v{64+i}, a{base+i}"))
            for i in range(16): st.append(valu(f"v_mul_f32 v{64+i}, s7, v{64+i}"))
            for hf in range(2):
                ks = 2 * d + hf; idx = t * 12 + ks
                dst = (128 + 4 * (idx - 16)) if idx >= 16 else (112 + 4 * hf)
                for e in range(4): st.append(valu(f"v_cvt_pk_bf16_f32 v{dst+e}, v{64+8*hf+2*e}, v{65+8*hf+2*e}"))
                st.append(salu("s_nop 1"))
                st.append(valu(f"v_permlane32_swap_b32 v{dst}, v{dst+2}"))
                st.append(valu(f"v_permlane32_swap_b32 v{dst+1}, v{dst+3}"))
                if idx < 16:
                    st.append(salu("s_nop 1"))
                    for e in range(4): st.append(valu(f"v_accvgpr_write_b32 a{192+4*idx+e}, v{dst+e}"))
    for i in range(192): st.append(valu(f"v_accvgpr_write_b32 a{i}, 0"))
    for t in range(2):
        for i in range(16): st.append(valu(f"v_mov_b32 v{MI(t)+i}, 0"))
        st.append(valu(f"v_mov_b32 v{V_L[t]}, 0")); st.append(valu(f"v_mov_b32 v{V_FAC[t]}, 1.0"))

    rare_blocks = []
    site_ctr = [0]
    def kfrag_read(tile, ks, fidx):
        a4, u = divmod(ks, 4)
        fr = FR(fidx)
        off = (tile % 4) * 12288 + a4 * 128
        return [ds(f"ds_read_b128 v[{fr}:{fr+3}], v{V_KRD[u]} offset:{off}", prod=f"KF{tile}_{ks}")]
    def vfrag_read(tile, ks2, d, fidx):
        fr = FR(fidx); r = []
        for u in range(2):
            off = (tile % 4) * 12288 + (16 * ks2 + 8 * u) * 384 + 64 * d
            r.append(ds(f"ds_read_b64_tr_b16 v[{fr+2*u}:{fr+2*u+1}], v{V_VRD[d%2]} offset:{off}", prod=f"VF{tile}_{ks2}_{d}"))
        return r
    def frag_reads(j, f):
        if f < 12: return kfrag_read(j + 1, f, f) if j + 1 <= 63 else []
        ks2, d = divmod(f - 12, 6)
        return vfrag_read(j, ks2, d, f) if j >= 0 else []
    def softmax_ops(tile):
        b = tile % 2
        ops = []
        mx = []
        for t in range(2):
            s = S(b, t); m = V_MT[t]
            l = [valu(f"v_max3_f32 v{m}, v{s}, v{s+1}, v{s+2}")]
            for i in range(3, 15, 2): l.append(valu(f"v_max3_f32 v{m}, v{m}, v{s+i}, v{s+i+1}"))
            l.append(valu(f"v_max_f32 v{m}, v{m}, v{s+15}"))
            mx.append(l)
        ops += mx[0] + mx[1]
        sid = site_ctr[0]; site_ctr[0] += 1
        ops += [valu(f"v_mov_b32 v{V_TMP[0]}, v{V_MT[0]}"), valu(f"v_mov_b32 v{V_TMP[1]}, v{V_MT[1]}"), salu("s_nop 0"),
                valu(f"v_permlane32_swap_b32 v{V_MT[0]}, v{V_TMP[0]}"), valu(f"v_permlane32_swap_b32 v{V_MT[1]}, v{V_TMP[1]}"),
                valu(f"v_max_f32 v{V_MT[0]}, v{V_MT[0]}, v{V_TMP[0]}"), valu(f"v_max_f32 v{V_MT[1]}, v{V_MT[1]}, v{V_TMP[1]}")]
        for t in range(2):
            grp = [valu(f"v_cmp_lt_f32 vcc, s{64+t}, v{V_MT[t]}"), salu(f"s_cbranch_vccnz RARE{sid}_{t}"), label(f"BACK{sid}_{t}")]
            ops.append(grp)
            s = S(b, t)
            rb = [label(f"RARE{sid}_{t}"),
                  valu(f"v_max_f32 v{V_TMP[t]}, s{66+t}, v{V_MT[t]}"),
                  valu(f"v_min_f32_e64 v{V_MT[t]}, -v{V_TMP[t]}, 0"),
                  valu(f"v_exp_f32 v{V_FAC[t]}, v{V_MT[t]}")]
            for i in range(16): rb.append(valu(f"v_sub_f32 v{s+i}, v{s+i}, v{V_TMP[t]}"))
            for i in range(16): rb.append(valu(f"v_sub_f32 v{MI(t)+i}, v{MI(t)+i}, v{V_TMP[t]}"))
            rb += [valu(f"v_mul_f32 v{V_L[t]}, v{V_L[t]}, v{V_FAC[t]}"),
                   salu("s_mov_b32 s49, 1"), salu(f"s_mov_b32 s{64+t}, 0x41000000"), salu(f"s_mov_b32 s{66+t}, 0"),
                   salu(f"s_branch BACK{sid}_{t}")]
            rare_blocks.append(rb)
        for hf in range(2):
            for t in range(2):
                s = S(b, t) + 8 * hf
                for e in range(4):
                    ops += [trans(f"v_exp_f32 v{s+2*e}, v{s+2*e}"), trans(f"v_exp_f32 v{s+2*e+1}, v{s+2*e+1}")]
                    if e > 0:
                        pe = e - 1
                        ops += [valu(f"v_add_f32 v{V_L[t]}, v{V_L[t]}, v{s+2*pe}"), valu(f"v_add_f32 v{V_L[t]}, v{V_L[t]}, v{s+2*pe+1}"),
                                valu(f"v_cvt_pk_bf16_f32 v{s+pe}, v{s+2*pe}, v{s+2*pe+1}")]
                ops += [salu("s_nop 0"), valu(f"v_add_f32 v{V_L[t]}, v{V_L[t]}, v{s+6}"), valu(f"v_add_f32 v{V_L[t]}, v{V_L[t]}, v{s+7}"),
                        valu(f"v_cvt_pk_bf16_f32 v{s+3}, v{s+6}, v{s+7}")]
        return ops
    def opcost(o): return sum(x.cost for x in o) if isinstance(o, list) else o.cost
    SM_START, SM_END = 26, 78
    def split_softmax(ops):
        tot = sum(opcost(o) for o in ops); n = SM_END - SM_START + 1
        res = {}; cum = 0; k = 0
        for gi in range(n):
            target = tot * (gi + 1) / n
            while k < len(ops) and cum + opcost(ops[k]) / 2 <= target:
                o = ops[k]; res.setdefault(SM_START + gi, []).extend(o if isinstance(o, list) else [o]); cum += opcost(o); k += 1
        while k < len(ops):
            o = ops[k]; res.setdefault(SM_END, []).extend(o if isinstance(o, list) else [o]); k += 1
        return res
    carry = {}
    rescale_sites = []
    def iteration(j):
        nonlocal carry
        mf = []; gaps = {}
        def addg(g, l): gaps.setdefault(g, []).extend(l)
        nb = (j + 1) % 2; b = j % 2
        do_qk = j + 1 <= 63; do_pv = j >= 0
        slots = []
        for f in range(24):
            fr = FR(f)
            for t in range(2):
                if f < 12:
                    if not do_qk: slots.append(None); continue
                    s = S(nb, t)
                    cin = f"v[{MI(t)}:{MI(t)+15}]" if f == 0 else f"v[{s}:{s+15}]"
                    slots.append(mfma(f"v_mfma_f32_32x32x16_bf16 v[{s}:{s+15}], v[{fr}:{fr+3}], {QF(t, f)}, {cin}", need=[f"KF{j+1}_{f}"]))
                else:
                    if not do_pv: slots.append(None); continue
                    ks2, d = divmod(f - 12, 6)
                    p = S(b, t) + 8 * ks2
                    slots.append(mfma(f"v_mfma_f32_32x32x16_bf16 {OA(t,d)}, v[{fr}:{fr+3}], v[{p}:{p+3}], {OA(t,d)}", need=[f"VF{j}_{ks2}_{d}"]))
        if j >= 0:
            toks = []
            if j + 2 <= 63: toks.append(f"K{j+2}")
            if j + 1 <= 63: toks.append(f"V{j+1}")
            addg(0, [wait_tok(toks), salu("s_barrier")])
            if j + 4 <= 63:
                d_ = kv_dma("K", j + 4); addg(1, d_[:3]); addg(3, d_[3:4]); addg(5, d_[4:])
            if j + 3 <= 63:
                d_ = kv_dma("V", j + 3); addg(7, d_[:3]); addg(9, d_[3:4]); addg(11, d_[4:])
        for f in range(24):
            fn = f + LA // 2
            if fn < 24: addg(2 * f, frag_reads(j, fn))
            else: addg(2 * f, frag_reads(j + 1, fn - 24))
        if not do_pv: addg(24, [salu("s_nop 15")])
        for g, l in carry.items(): addg(g, l)
        carry = {}
        if do_qk:
            sm = split_softmax(softmax_ops(j + 1))
            for g, l in sm.items():
                if g < 48: addg(g, l)
                else: carry.setdefault(g - 48, []).extend(l)
        rid = len(rescale_sites); rescale_sites.append(rid)
        addg(47, [salu("s_cmp_lg_u32 s49, 0"), salu(f"s_cbranch_scc1 RSTUB{rid}"), label(f"RBACK{rid}")])
        out = list(gaps.get(-1, []))
        for g in range(48):
            if slots[g] is not None: out.append(slots[g])
            out.extend(gaps.get(g, []))
        return out
    st.append(wait_tok(["K0", "K1", "V0"]))
    st.append(salu("s_barrier"))
    for f in range(LA // 2): st += frag_reads(-1, f)
    st.append(salu("s_nop 1"))
    st += iteration(-1)
    st, state, _ = insert_waits(st)
    saved = (dict(carry), site_ctr[0], len(rare_blocks), len(rescale_sites))
    bodyA = []
    for j in range(0, 4): bodyA += iteration(j)
    bodyA_w, stateA, logA = insert_waits(bodyA, state)
    carryA = dict(carry)
    nrare, nres, nsite = len(rare_blocks), len(rescale_sites), site_ctr[0]
    bodyB = []
    for j in range(4, 8): bodyB += iteration(j)
    bodyB_w, stateB, logB = insert_waits(bodyB, stateA)
    del rare_blocks[nrare:]; del rescale_sites[nres:]; site_ctr[0] = nsite
    carry = carryA
    la = {i: (v, l) for i, v, l in logA}; lb = {i: (v, l) for i, v, l in logB}
    assert len(bodyA) == len(bodyB)
    merged = []
    for i, ins in enumerate(bodyA):
        cand = [x[i] for x in (la, lb) if i in x]
        if cand:
            vs = [c[0] for c in cand if c[0] is not None]; ls = [c[1] for c in cand if c[1] is not None]
            parts = []
            if vs: parts.append(f"vmcnt({min(vs)})")
            if ls: parts.append(f"lgkmcnt({min(ls)})")
            merged.append(Ins("s_waitcnt " + " ".join(parts), "wait"))
        if ins.kind != "waitpt": merged.append(ins)
    loop = [salu("s_mov_b32 s48, 0"), raw(".p2align 6"), label("K1_LOOP")] + merged + \
           [salu("s_add_u32 s48, s48, 1"), salu("s_cmp_lt_u32 s48, 15"), salu("s_cbranch_scc1 K1_LOOP")]
    def ren(tok):
        if tok is None: return None
        m = re.match(r"(KF|VF|K|V)(\d+)(.*)", tok)
        return f"{m.group(1)}{int(m.group(2))+56}{m.group(3)}"
    stT = ([ren(x) for x in stateB[0]], [ren(x) for x in stateB[1]])
    tail = []
    for j in range(60, 64): tail += iteration(j)
    tail_w, stateE, _ = insert_waits(tail, stT)
    ep = []
    E = ep.append
    E(salu("s_nop 15")); E(salu("s_nop 3"))
    for t in range(2):
        E(valu(f"v_mov_b32 v{V_TMP[t]}, v{V_L[t]}"))
    E(salu("s_nop 1"))
    for t in range(2):
        E(valu(f"v_permlane32_swap_b32 v{V_L[t]}, v{V_TMP[t]}"))
    for t in range(2):
        E(valu(f"v_add_f32 v{V_L[t]}, v{V_L[t]}, v{V_TMP[t]}"))
    for t in range(2):
        E(valu(f"v_rcp_f32 v{V_L[t]}, v{V_L[t]}"))
    E(valu("v_and_b32 v32, 31, v1")); E(valu("v_lshrrev_b32 v33, 5, v1"))
    E(salu("s_lshl_b32 s6, s4, 8")); E(salu("s_lshl_b32 s7, s5, 6")); E(salu("s_add_u32 s6, s6, s7"))
    E(valu("v_add_u32 v34, s6, v32"))
    E(salu("s_movk_i32 s7, 12288"))
    E(valu("v_mul_lo_u32 v35, v34, s7"))
    E(valu("v_lshl_add_u32 v35, v33, 4, v35"))
    E(valu(f"v_add_u32 v36, {32*12288}, v35"))
    E(salu("s_mul_i32 s6, s3, 384"))
    k = 0
    for t in range(2):
        for d in range(6):
            base = (t * 6 + d) * 16
            tb = 64 + (k % 2) * 16; ob = 96 + (k % 4) * 8; k += 1
            for i in range(16): E(valu(f"v_accvgpr_read_b32 v{tb+i}, a{base+i}"))
            for i in range(16): E(valu(f"v_mul_f32 v{tb+i}, v{tb+i}, v{V_L[t]}"))
            for i in range(8): E(valu(f"v_cvt_pk_bf16_f32 v{ob+i}, v{tb+2*i}, v{tb+2*i+1}"))
            E(salu("s_nop 1"))
            for hf in range(2):
                E(valu(f"v_permlane32_swap_b32 v{ob+4*hf}, v{ob+4*hf+2}"))
                E(valu(f"v_permlane32_swap_b32 v{ob+4*hf+1}, v{ob+4*hf+3}"))
            E(salu("s_nop 1"))
            for hf in range(2):
                E(vm(f"buffer_store_dwordx4 v[{ob+4*hf}:{ob+4*hf+3}], v{35+t}, s[28:31], s6 offen offset:{64*d+32*hf}"))
    E(salu("s_waitcnt vmcnt(0)"))
    E(salu("s_endpgm"))
    rs = []
    for rid in rescale_sites:
        rs += [label(f"RSTUB{rid}"), salu(f"s_mov_b32 s50, {rid}"), salu("s_branch RESCALE")]
    rs += [label("RESCALE"), salu("s_nop 15"), salu("s_nop 3")]
    for t in range(2):
        for blk in range(6):
            base = (t * 6 + blk) * 16
            for i in range(16): rs.append(valu(f"v_accvgpr_read_b32 v{V_T0+i}, a{base+i}"))
            for i in range(16): rs.append(valu(f"v_mul_f32 v{V_T0+i}, v{V_T0+i}, v{V_FAC[t]}"))
            for i in range(16): rs.append(valu(f"v_accvgpr_write_b32 a{base+i}, v{V_T0+i}"))
    for t in range(2): rs.append(valu(f"v_mov_b32 v{V_FAC[t]}, 1.0"))
    rs += [salu("s_mov_b32 s49, 0"), salu("s_nop 1")]
    for rid in rescale_sites:
        rs += [salu(f"s_cmp_eq_u32 s50, {rid}"), salu(f"s_cbranch_scc1 RBACK{rid}")]
    rs.append(salu("s_endpgm"))
    full = st + loop + tail_w + ep
    errs = check_hazards(full, "k1")
    for e in errs[:40]: print("HAZARD", e)
    allc = full
    for rb in rare_blocks: allc = allc + rb
    allc = allc + rs + [label("K1_DONE"), salu("s_endpgm")]
    return head(name) + render(allc) + "\n" + kd(name, 512, 72, 256), len(errs)
```

```python
from core import *
from k01 import *

LDS_K2 = 6 * 20480
def gen_k2(name="oproj_kernel", LA=6):
    pre = []; A = pre.append
    A("s_cmp_ge_u32 s2, 256")
    A("s_cbranch_scc1 K2_DONE")
    A("s_load_dwordx2 s[52:53], s[0:1], 32")
    A("s_load_dwordx2 s[54:55], s[0:1], 64")
    A("s_load_dwordx2 s[58:59], s[0:1], 96")
    A("s_and_b32 s3, s2, 7")
    A("s_lshr_b32 s4, s2, 3")
    A("s_lshr_b32 s6, s3, 1")
    A("s_and_b32 s3, s3, 1")
    A("s_lshl_b32 s3, s3, 3")
    A("s_lshr_b32 s5, s4, 2")
    A("s_add_u32 s3, s3, s5")
    A("s_and_b32 s4, s4, 3")
    A("v_lshrrev_b32 v2, 6, v0")
    A("v_and_b32 v1, 63, v0")
    A("s_nop 0")
    A("v_readfirstlane_b32 s5, v2")
    A("s_waitcnt lgkmcnt(0)")
    pre += srd(8, 58, O_BYTES, O_OFF)
    pre += srd(12, 52, 6144 * 640 * 2)
    pre += srd(16, 58, H_BYTES, H_OFF)
    pre += srd(20, 54, 1536 * 640 * 2)
    pre += srd(28, 58, 5 * P_BYTES, P_OFF)
    A("v_and_b32 v32, 31, v1")
    A("v_lshrrev_b32 v33, 5, v1")
    A("s_lshl_b32 s7, s3, 7")
    A("s_lshl_b32 s24, s5, 5")
    A("s_add_u32 s7, s7, s24")
    A("v_add_u32 v34, s7, v32")
    A("s_movk_i32 s24, 12288")
    A("v_mul_lo_u32 v35, v34, s24")
    A("v_lshl_add_u32 v2, v33, 4, v35")
    A("s_movk_i32 s24, 3072")
    A("v_mul_lo_u32 v35, v34, s24")
    A("v_lshl_add_u32 v3, v33, 4, v35")
    A("s_movk_i32 s24, 2560")
    A("v_mul_lo_u32 v35, v34, s24")
    A("v_lshl_add_u32 v4, v33, 4, v35")
    A("s_mul_i32 s24, s5, 320")
    for i in range(5):
        A("v_add_u32 v36, s24, v1")
        if i: A(f"v_add_u32 v36, {64*i}, v36")
        A("v_mul_u32_u24 v37, 3277, v36")
        A("v_lshrrev_b32 v37, 16, v37")
        A("v_mul_u32_u24 v38, 20, v37")
        A("v_sub_u32 v38, v36, v38")
        A("v_lshlrev_b32 v38, 4, v38")
        A("v_mul_u32_u24 v40, 1280, v37")
        A("v_add_u32 v40, v40, v38")
        if i <= 3: A(f"v_subrev_u32 v{5+i}, {1024*i}, v40")
        else: A(f"v_mov_b32 v{5+i}, v40")
    A("v_bfe_u32 v36, v1, 4, 1")
    A("v_bfe_u32 v37, v1, 2, 2")
    A("v_and_b32 v38, 3, v1")
    A("v_lshlrev_b32 v40, 5, v36")
    A("v_lshl_add_u32 v40, v38, 3, v40")
    A("v_lshl_add_u32 v42, v33, 3, v37")
    A("v_mul_u32_u24 v43, 320, v42")
    A("v_add_u32 v10, v43, v40")
    A(f"v_add_u32 v11, {3*20480}, v10")
    A("s_mul_i32 s44, s5, 5120")
    A("s_mul_i32 s24, s6, 1920")
    A("s_mul_i32 s40, s24, 1280")
    A("s_mul_i32 s25, s4, 320")
    A("s_add_u32 s40, s40, s25")
    A("s_lshl_b32 s41, s24, 1")
    A("s_cmp_eq_u32 s6, 3")
    A("s_cselect_b32 s48, 1, 5")
    A(f"s_mul_i32 s50, s6, {P_BYTES}")
    A("s_mul_i32 s25, s4, 640")
    A("s_add_u32 s50, s50, s25")
    A("s_mov_b32 s51, 0")
    for i in range(4):
        A(f"s_mov_b32 s{60+i}, s{8+i}")
        A(f"s_mov_b32 s{64+i}, s{12+i}")
    A("v_mov_b32 v12, v2")
    st = [salu(x) if x.startswith("s_") else valu(x) for x in pre]
    def FRg(F): return 160 + 4 * (F % 4)
    def XB(c, s): return 64 + (c % 6) * 16 + 4 * s
    def AC(n): return f"a[{16*n}:{16*n+15}]"
    def dma_w(c):
        sl = (c % 6) * 20480
        r = [salu(f"s_add_u32 m0, s44, {sl}"), salu("s_nop 0")]
        for i in range(4):
            r.append(vm(f"buffer_load_dwordx4 v{5+i}, s[64:67], s40 offen offset:{1024*i} lds", prod=f"W{c}"))
        r.append(salu(f"s_add_u32 m0, s44, {sl+4096}"))
        r.append(salu("s_nop 0"))
        r.append(vm(f"buffer_load_dwordx4 v9, s[64:67], s40 offen lds", prod=f"W{c}"))
        r.append(salu(f"s_add_u32 s40, s40, {64*1280}"))
        return r
    def xload(c):
        r = []
        for s in range(4):
            x = XB(c, s)
            r.append(vm(f"buffer_load_dwordx4 v[{x}:{x+3}], v12, s[60:63], s41 offen offset:{32*s}", prod=f"X{c}"))
        r.append(salu("s_add_u32 s41, s41, 128"))
        return r
    def wfrag_reads(F):
        c, f = divmod(F, 20); s, n = divmod(f, 5)
        sl = c % 6
        base = 10 if sl < 3 else 11
        fr = FRg(F); r = []
        for u in range(2):
            off = (sl % 3) * 20480 + (16 * s + 4 * u) * 320 + 64 * n
            r.append(ds(f"ds_read_b64_tr_b16 v[{fr+2*u}:{fr+2*u+1}], v{base} offset:{off}", prod=f"WF{F}"))
        return r
    def body(c0):
        mf = []; gaps = {}
        def addg(g, l): gaps.setdefault(g, []).extend(l)
        for cc in range(6):
            c = c0 + cc
            g0 = 20 * cc
            addg(g0, [wait_tok([f"W{c+1}"]), salu("s_barrier")])
            d = dma_w(c + 5)
            addg(g0 + 1, d[:4]); addg(g0 + 3, d[4:6]); addg(g0 + 5, d[6:])
            xl = xload(c + 4)
            addg(g0 + 8, xl[:2]); addg(g0 + 10, xl[2:])
            for f in range(20):
                F = 20 * c + f; s, n = divmod(f, 5)
                fr = FRg(F); x = XB(c, s)
                mf.append(mfma(f"v_mfma_f32_32x32x16_bf16 {AC(n)}, v[{fr}:{fr+3}], v[{x}:{x+3}], {AC(n)}", need=[f"WF{F}", f"X{c}"]))
                addg(g0 + f, wfrag_reads(F + 3))
        return weave(mf, gaps)
    passpro = [label("K2_PASS")]
    for i in range(80): passpro.append(valu(f"v_accvgpr_write_b32 a{i}, 0"))
    for c in range(5):
        passpro += dma_w(c)
        if c < 4: passpro += xload(c)
    passpro += [wait_tok(["W0"]), salu("s_barrier")]
    for F in range(3): passpro += wfrag_reads(F)
    passpro_w, state, _ = insert_waits(passpro)
    bA = body(0); bA_w, stA, logA = insert_waits(bA, state)
    bB = body(6); bB_w, stB, logB = insert_waits(bB, stA)
    la = {i: (v, l) for i, v, l in logA}; lb = {i: (v, l) for i, v, l in logB}
    merged = []
    for i, ins in enumerate(bA):
        cand = [x[i] for x in (la, lb) if i in x]
        if cand:
            vs = [c[0] for c in cand if c[0] is not None]; ls = [c[1] for c in cand if c[1] is not None]
            parts = []
            if vs: parts.append(f"vmcnt({min(vs)})")
            if ls: parts.append(f"lgkmcnt({min(ls)})")
            merged.append(Ins("s_waitcnt " + " ".join(parts), "wait"))
        if ins.kind != "waitpt": merged.append(ins)
    loop = [raw(".p2align 6"), label("K2_LOOP")] + merged + \
           [salu("s_sub_u32 s48, s48, 1"), salu("s_cmp_lg_u32 s48, 0"), salu("s_cbranch_scc1 K2_LOOP")]
    ep = [salu("s_waitcnt vmcnt(0) lgkmcnt(0)"), salu("s_nop 15"), salu("s_nop 3")]
    for n in range(5):
        for g in range(4):
            ep.append(vm(f"buffer_store_dwordx4 a[{16*n+4*g}:{16*n+4*g+3}], v4, s[28:31], s50 offen offset:{128*n+32*g}"))
    ep += [salu("s_cmp_lg_u32 s6, 3"), salu("s_cbranch_scc1 K2_END"),
           salu("s_cmp_lg_u32 s51, 0"), salu("s_cbranch_scc1 K2_END"),
           salu("s_mov_b32 s51, 1"), salu("s_mov_b32 s48, 4"),
           salu("s_mul_i32 s40, s4, 320"), salu("s_mov_b32 s41, 0"),
           salu(f"s_add_u32 s50, s50, {P_BYTES}")]
    for i in range(4):
        ep.append(salu(f"s_mov_b32 s{60+i}, s{16+i}")); ep.append(salu(f"s_mov_b32 s{64+i}, s{20+i}"))
    ep += [valu("v_mov_b32 v12, v3"), salu("s_waitcnt vmcnt(0)"), salu("s_barrier"), salu("s_branch K2_PASS"),
           label("K2_END"), salu("s_waitcnt vmcnt(0)"), label("K2_DONE"), salu("s_endpgm")]
    full = st + passpro_w + loop + ep
    errs = check_hazards(full, "k2")
    for e in errs[:20]: print("HAZARD", e)
    return head(name) + render(full) + "\n" + kd(name, 256 + 80, 72, 256), len(errs)

def gen_k3(name):
    L = []; A = L.append
    A("s_cmp_ge_u32 s2, 640")
    A("s_cbranch_scc1 K3_DONE")
    A("s_load_dwordx2 s[4:5], s[0:1], 0")
    A("s_load_dwordx2 s[6:7], s[0:1], 72")
    A("s_load_dwordx4 s[24:27], s[0:1], 80")
    A("s_load_dwordx2 s[28:29], s[0:1], 96")
    A("s_lshl_b32 s3, s2, 8")
    A("v_add_u32 v1, s3, v0")
    A("v_lshlrev_b32 v2, 4, v1")
    A("v_lshlrev_b32 v3, 5, v1")
    A("s_mov_b32 s3, 0x3333334")
    A("v_mul_hi_u32 v4, v1, s3")
    A("v_mul_u32_u24 v4, 80, v4")
    A("v_sub_u32 v4, v1, v4")
    A("v_lshlrev_b32 v4, 4, v4")
    A("s_waitcnt lgkmcnt(0)")
    L += srd(8, 4, 2048 * 640 * 2)
    L += srd(12, 6, 640 * 2)
    L += srd(16, 24, 2048 * 640 * 2)
    L += srd(20, 28, 5 * P_BYTES, P_OFF)
    A("buffer_load_dwordx4 v[8:11], v2, s[8:11], 0 offen")
    A("buffer_load_dwordx4 v[12:15], v4, s[12:15], 0 offen")
    for p in range(5):
        A(f"s_mov_b32 s3, {p*P_BYTES}")
        A(f"buffer_load_dwordx4 v[{16+8*p}:{19+8*p}], v3, s[20:23], s3 offen")
        A(f"buffer_load_dwordx4 v[{20+8*p}:{23+8*p}], v3, s[20:23], s3 offen offset:16")
    A("s_waitcnt vmcnt(0)")
    for i in range(8):
        A(f"v_add_f32 v{16+i}, v{16+i}, v{24+i}")
        A(f"v_add_f32 v{32+i}, v{32+i}, v{40+i}")
    for i in range(8): A(f"v_add_f32 v{16+i}, v{16+i}, v{32+i}")
    for i in range(4):
        A(f"v_lshlrev_b32 v{56+2*i}, 16, v{12+i}")
        A(f"v_and_b32 v{57+2*i}, 0xffff0000, v{12+i}")
        A(f"v_lshlrev_b32 v{64+2*i}, 16, v{8+i}")
        A(f"v_and_b32 v{65+2*i}, 0xffff0000, v{8+i}")
    for i in range(8): A(f"v_add_f32 v{48+i}, v{48+i}, v{56+i}")
    A(f"s_mov_b32 s3, {hex(f2u(-math.log2(math.e)))}")
    for i in range(8): A(f"v_mul_f32 v{56+i}, s3, v{48+i}")
    for i in range(8): A(f"v_exp_f32 v{56+i}, v{56+i}")
    A("s_nop 0")
    for i in range(8): A(f"v_add_f32 v{56+i}, 1.0, v{56+i}")
    for i in range(8): A(f"v_rcp_f32 v{56+i}, v{56+i}")
    A("s_nop 0")
    for i in range(8): A(f"v_mul_f32 v{48+i}, v{48+i}, v{56+i}")
    for i in range(8): A(f"v_fmac_f32 v{64+i}, v{16+i}, v{48+i}")
    for i in range(4): A(f"v_cvt_pk_bf16_f32 v{8+i}, v{64+2*i}, v{65+2*i}")
    A("buffer_store_dwordx4 v[8:11], v2, s[16:19], 0 offen")
    A("s_waitcnt vmcnt(0)")
    A("K3_DONE:")
    A("s_endpgm")
    return head(name) + "\n".join("    " + l if not l.endswith(":") else l for l in L) + "\n" + kd(name, 72, 32, 72)
```

```python
import sys
from k01 import *
from k23 import *
NAME = "recurrent_scan__mha_block_cached__dense_activation_squared_relu__prompt"
HDR = open(f"cdna_kernels/{NAME}.s.ref").read().split("; Override")[0]
def build(path, kernels):
    s = HDR
    for name, grid, block, lds, text in kernels:
        s += f"; @launch kernel={name} grid=({grid},1,1) block=({block},1,1) lds={lds}\n"
    s += '.amdgcn_target "amdgcn-amd-amdhsa--gfx950"\n.text\n'
    for k in kernels: s += k[4]
    open(path, "w").write(s)
if __name__ == "__main__":
    k1, ne = gen_k1()
    k2, ne2 = gen_k2()
    ks = [("ln_kernel", 128, 256, 0, gen_k0()), ("attn_kernel", 256, 256, LDS_K1, k1),
          ("oproj_kernel", 256, 256, LDS_K2, k2), (NAME + "_kernel", 640, 256, 0, gen_k3(NAME + "_kernel"))]
    build(sys.argv[1] if len(sys.argv) > 1 else "k01.s", ks)
    print("hazard errors:", ne, ne2)
```
